```python
import torch

def _softmax(x, axis=-1):
    return torch.softmax(x, dim=axis)
def _gelu(x):
    return torch.nn.functional.gelu(x, approximate="tanh")
def _silu(x):
    return torch.nn.functional.silu(x)
def _sigmoid(x):
    return torch.sigmoid(x)
def _layernorm(x, axis=-1, eps=1e-5):
    m = x.mean(dim=axis, keepdim=True)
    v = x.var(dim=axis, keepdim=True, unbiased=False)
    return (x - m) / torch.sqrt(v + eps)
def _scatter_add(tgt, idx, src, axis=0):
    return tgt.clone().index_add_(axis, idx, src)
def _segment_sum(src, seg, n):
    out = torch.zeros((n,) + src.shape[1:], dtype=src.dtype)
    return out.index_add_(0, seg, src)
def _pad(x, pw):
    flat = tuple(v for pair in reversed(pw) for v in pair)
    return torch.nn.functional.pad(x, flat)

kernel_name = 'recurrent_scan__spectral_fnet__dense_activation_relu__prompt'

def setup_inputs():

    _w = (lambda a: (lambda t: t.to(torch.bfloat16) if t.is_floating_point() else t)(torch.as_tensor(a)))
    def _A_setup():
        B, S, D = 1, 2048, 448
        ns = torch.arange(S)[:, None] * torch.arange(S)[None, :]
        nd = torch.arange(D)[:, None] * torch.arange(D)[None, :]
        Ws_re = torch.cos(-2.0 * torch.pi * ns / S).to(float)
        Ws_im = torch.sin(-2.0 * torch.pi * ns / S).to(float)
        Wd_re = torch.cos(-2.0 * torch.pi * nd / D).to(float)
        Wd_im = torch.sin(-2.0 * torch.pi * nd / D).to(float)
        return {
            "x": _w((lambda *s: torch.randn(*s, dtype=torch.bfloat16) * 0.05)(B, S, D)),
            "dft_seq_re": _w(Ws_re),
            "dft_seq_im": _w(Ws_im),
            "dft_hid_re": _w(Wd_re),
            "dft_hid_im": _w(Wd_im),
        }
    _A_in = _A_setup()

    def _B_setup():
        B, S, D, Dff = 1, 2048, 448, 1792
        return {
            "x": _w((lambda *s: torch.randn(*s, dtype=torch.bfloat16) * 0.05)(B, S, D)),
            "w1": _w((lambda *s: torch.randn(*s, dtype=torch.bfloat16) * 0.05)(D, Dff)),
            "w2": _w((lambda *s: torch.randn(*s, dtype=torch.bfloat16) * 0.05)(Dff, D)),
        }
    _B_in = _B_setup()

    return {
        "A_x": _A_in["x"],
        "A_dft_seq_re": _A_in["dft_seq_re"],
        "A_dft_seq_im": _A_in["dft_seq_im"],
        "A_dft_hid_re": _A_in["dft_hid_re"],
        "A_dft_hid_im": _A_in["dft_hid_im"],
        "B_x": _B_in["x"],
        "B_w1": _B_in["w1"],
        "B_w2": _B_in["w2"],
    }

def reference(A_x, A_dft_seq_re, A_dft_seq_im, A_dft_hid_re, A_dft_hid_im, B_x, B_w1, B_w2):
    def _A_ref(x, dft_seq_re, dft_seq_im, dft_hid_re, dft_hid_im):
        a = torch.einsum("bsd,ed->bse", x, dft_hid_re)
        b = torch.einsum("bsd,ed->bse", x, dft_hid_im)
        y = torch.einsum("ts,bse->bte", dft_seq_re, a) - torch.einsum("ts,bse->bte", dft_seq_im, b)
        return y

    def _B_ref(x, w1, w2):
        h = torch.einsum("bsd,df->bsf", x, w1)
        zero = torch.zeros_like(h)
        h = torch.maximum(h, zero)
        return torch.einsum("bsf,fd->bsd", h, w2)

    x = A_x
    xn = _layernorm(x, axis=-1)
    s = _A_ref(xn, A_dft_seq_re, A_dft_seq_im, A_dft_hid_re, A_dft_hid_im)
    g = _silu(_B_ref(xn, B_w1, B_w2))
    return x + s * g
```

```python
import re
TRANS = ("v_exp_f32", "v_log_f32", "v_rcp_f32", "v_rsq_f32", "v_sqrt_f32", "v_sin_f32", "v_cos_f32")

def regs(op):
    op = op.strip().lstrip("-")
    op = op.replace("abs(", "").replace(")", "").replace("|", "")
    m = re.fullmatch(r"([vsa])\[(\d+):(\d+)\]", op)
    if m: return {(m.group(1), i) for i in range(int(m.group(2)), int(m.group(3)) + 1)}
    m = re.fullmatch(r"([vsa])(\d+)", op)
    if m: return {(m.group(1), int(m.group(2)))}
    if op in ("vcc", "vcc_lo", "vcc_hi"): return {("s", "vcc")}
    if op == "m0": return {("s", "m0")}
    if op in ("exec", "exec_lo", "exec_hi"): return {("s", "exec")}
    return set()

class I:
    pass

def parse(line):
    line = line.split(";")[0].strip()
    while re.match(r"^[\w.$]+:", line):
        line = line.split(":", 1)[1].strip()
    if not line or line.startswith("."): return None
    parts = line.split(None, 1)
    i = I(); i.text = line; i.op = parts[0]
    rest = parts[1] if len(parts) > 1 else ""
    toks = [t.strip() for t in rest.split(",")]
    ops = []
    for t in toks:
        ops.append(t.split()[0] if t else "")
    mods = rest
    op = i.op
    i.states = 1
    i.w = set(); i.r = set(); i.cls = "other"; i.srcC = set(); i.ab = set(); i.data = set()
    if op == "s_nop":
        i.states = int(rest, 0) + 1; return i
    if op.startswith("v_mfma"):
        i.cls = "mfma"; i.w = regs(ops[0]); i.ab = regs(ops[1]) | regs(ops[2]); i.srcC = regs(ops[3]); i.r = i.ab | i.srcC
        i.passes = 8 if "32x32" in op else 4
    elif op.startswith("v_"):
        i.cls = "valu"
        i.w = regs(ops[0]); srcs = ops[1:]
        if op.startswith(("v_add_co", "v_addc_co", "v_sub_co", "v_subb_co")):
            i.w |= regs(ops[1]); srcs = ops[2:]
        for s in srcs: i.r |= regs(s)
        if "permlane" in op and "swap" in op:
            i.w |= regs(ops[1]); i.r |= regs(ops[0])
        if op.startswith(("v_fmac", "v_dot2c")): i.r |= regs(ops[0])
        if op.startswith("v_dot2c"): i.srcC = regs(ops[0]); i.ab = regs(ops[1]) | regs(ops[2])
        elif op.startswith("v_dot2"): i.srcC = regs(ops[3]); i.ab = regs(ops[1]) | regs(ops[2])
        i.dpp = "_dpp" in op or "quad_perm" in mods or "row_" in mods
        if i.dpp: i.dppsrc = regs(ops[1])
    elif op.startswith(("buffer_", "global_")):
        i.cls = "vmem"
        lds = re.search(r"\blds\b", mods) is not None
        i.lds = lds
        if op.startswith("buffer_load"):
            if lds:
                for s in ops: i.r |= regs(s)
            else:
                i.w = regs(ops[0])
                for s in ops[1:]: i.r |= regs(s)
        elif op.startswith("global_load"):
            i.w = regs(ops[0])
            for s in ops[1:]: i.r |= regs(s)
        else:
            for s in ops: i.r |= regs(s)
            if "x4" in op or "x3" in op:
                i.data = regs(ops[0]) if op.startswith("buffer") else regs(ops[1])
    elif op.startswith("ds_"):
        i.cls = "ds"
        if op.startswith(("ds_read", "ds_bpermute", "ds_permute", "ds_swizzle")):
            i.w = regs(ops[0])
            for s in ops[1:]: i.r |= regs(s)
        else:
            for s in ops: i.r |= regs(s)
    elif op.startswith("s_"):
        i.cls = "salu"
        if not op.startswith(("s_cmp", "s_waitcnt", "s_barrier", "s_cbranch", "s_branch", "s_endpgm", "s_sleep", "s_setprio")):
            i.w = regs(ops[0])
            for s in ops[1:]: i.r |= regs(s)
    return i

def need(p, c):
    n = 0
    V = lambda s: {x for x in s if x[0] in "va"}
    Sg = lambda s: {x for x in s if x[0] == "s"}
    if p.cls == "valu":
        pw = V(p.w); ps = Sg(p.w)
        isdot = p.op.startswith("v_dot")
        if c.cls == "mfma" and pw & c.r: n = max(n, 3 if isdot else 2)
        if c.cls == "valu":
            if c.op.startswith(("v_readfirstlane", "v_readlane")) and pw & c.r: n = max(n, 1)
            if getattr(c, "dpp", False) and pw & c.dppsrc: n = max(n, 2)
            if "permlane" in c.op and pw & c.r: n = max(n, 2)
            if p.op.startswith(TRANS) and not c.op.startswith(TRANS) and pw & c.r: n = max(n, 1)
            if ps & c.r: n = max(n, 2)
            if isdot:
                if c.op == p.op:
                    if pw & c.ab: n = max(n, 3)
                elif pw & (c.r | c.w): n = max(n, 3)
        if isdot and c.cls in ("vmem", "ds") and pw & c.r: n = max(n, 3)
        if c.cls == "vmem" and ps & c.r: n = max(n, 5)
    if p.cls == "mfma":
        big = 12 if p.passes == 8 else 8
        if c.cls == "mfma":
            if p.w & c.ab: n = max(n, big)
            if p.w & c.srcC and not (p.w == c.srcC and p.passes == c.passes): n = max(n, big - 2)
            if p.w & c.w and not (p.w & c.srcC): n = max(n, big - 2)
        elif c.cls in ("valu", "vmem", "ds"):
            if p.w & (c.r | c.w): n = max(n, big)
            if c.cls == "valu" and p.srcC & c.w: n = max(n, p.passes - 1)
    if p.cls == "salu" and ("s", "m0") in p.w and c.cls == "vmem" and getattr(c, "lds", False): n = max(n, 1)
    if p.cls == "vmem" and p.data and c.cls in ("valu", "mfma") and p.data & c.w: n = max(n, 2)
    return n

def check(lines):
    ins = []
    for ln, l in enumerate(lines):
        i = parse(l)
        if i is not None:
            i.ln = ln; ins.append(i)
    bad = []
    for k, c in enumerate(ins):
        dist = 0
        for j in range(k - 1, max(-1, k - 14), -1):
            p = ins[j]
            if p.op in ("s_branch", "s_endpgm"): break
            n = need(p, c)
            if n > dist: bad.append((p.ln + 1, p.text, c.ln + 1, c.text, n, dist))
            dist += p.states
            if dist >= 12: break
    return bad

if __name__ == "__main__":
    import sys
    b = check(open(sys.argv[1]).read().split("\n"))
    for x in b: print("HAZARD need %d have %d\n   %d: %s\n   %d: %s" % (x[4], x[5], x[0], x[1], x[2], x[3]))
    print(len(b), "hazards")
```

```python
import numpy as np
S, D, F = 2048, 448, 1792

def bf16_bits(a):
    a = np.ascontiguousarray(a, dtype=np.float32)
    u = a.view(np.uint32)
    r = ((u + 0x7FFF + ((u >> 16) & 1)) >> 16).astype(np.uint16)
    return r
def bf16_val(bits):
    return (bits.astype(np.uint32) << 16).view(np.float32)
def rb16(a):
    return bf16_val(bf16_bits(a))

def group_of(rb, half):
    return (32 - rb if rb else 16) if half else rb
def t1_of(g, th):
    return (64 - g if g else 32) if th else g

def cs_matrix(par):
    d = np.arange(224)
    M = np.zeros((224, 4, 16, 4))
    for wq in range(4):
        for c in range(16):
            for n in range(4):
                idx = 28 * wq + 2 * c + (n >> 1)
                eps = 2 * idx + par
                if eps > 224:
                    continue
                ang = 2 * np.pi * ((d * eps) % 448) / 448
                col = np.sin(ang) if (n & 1) else np.cos(ang)
                if (n & 1) and eps in (0, 224):
                    col = col * 0
                M[:, wq, c, n] = col
    return M

def cs_table():
    T = np.zeros((2, 4, 7, 4, 64, 8), np.uint16)
    for par in range(2):
        M = bf16_bits(cs_matrix(par))
        for ks in range(7):
            for l in range(64):
                c, q = l & 15, l >> 4
                k = 32 * ks + 8 * q + np.arange(8)
                T[par, :, ks, :, l, :] = np.transpose(M[k][:, :, c, :], (1, 2, 0))
    return T

def m1_matrix():
    s1 = np.arange(64)
    M = np.zeros((64, 64))
    for g in range(32):
        M[2 * g] = np.cos(2 * np.pi * ((g * s1) % 64) / 64)
        M[2 * g + 1] = np.sin(2 * np.pi * ((g * s1) % 64) / 64) if g else np.cos(np.pi * s1)
    return M

def m1_table():
    M = bf16_bits(m1_matrix())
    T = np.zeros((4, 2, 64, 8), np.uint16)
    for rt in range(4):
        for kk in range(2):
            for l in range(64):
                i, q = l & 15, l >> 4
                s1 = np.concatenate([32 * kk + 4 * q + np.arange(4), 32 * kk + 16 + 4 * q + np.arange(4)])
                T[rt, kk, l] = M[16 * rt + i, s1]
    return T

def emulate(x, w1, w2):
    x64 = x.astype(np.float64)
    mu = x64.mean(1); var = (x64 ** 2).mean(1) - mu ** 2
    r = 1 / np.sqrt(var + 1e-5)
    z = x64 @ w1.astype(np.float64) - mu[:, None] * w1.astype(np.float64).sum(0)[None, :]
    Hp = rb16(np.maximum(z, 0))
    Fm = (Hp.astype(np.float64) @ w2.astype(np.float64)) * r[:, None]
    xn = (x64 - mu[:, None]) * r[:, None]
    U = [rb16(xn[:, :224] + xn[:, 224:]), rb16(xn[:, :224] - xn[:, 224:])]
    M1 = rb16(m1_matrix()).astype(np.float64)
    Dm = np.zeros((32, 32, 2, 128, 2, 2), np.float32)
    for par in range(2):
        C = rb16(cs_matrix(par)).astype(np.float64)
        V = rb16(np.einsum('sk,kwcn->swcn', U[par].astype(np.float64), C))
        for s2 in range(32):
            O = rb16(np.einsum('js,swcn->jwcn', M1, V[s2::32].astype(np.float64)))
            for wq in range(4):
                for c in range(16 if wq == 3 else 14):
                    for n in range(4):
                        idx = 28 * wq + 2 * c + (n >> 1)
                        Dm[:, s2, par, idx, n & 1, :] = O[:, wq, c, n].reshape(32, 2)
    Y = np.zeros((S, D))
    e = np.arange(D); eps = np.where(e <= 224, e, 448 - e); tau = np.where(e < 224, 1.0, -1.0)
    s2 = np.arange(32)
    for g in range(32):
        Dg = Dm[g][:, eps & 1, eps >> 1].astype(np.float64)
        for th in range(2):
            t = t1_of(g, th) + 64 * np.arange(32)
            ang = 2 * np.pi * ((t[:, None] * s2[None, :]) % 2048) / 2048
            Cc, Ss = np.cos(ang), np.sin(ang)
            if g: al, be, ga = 1.0, (1.0 if th else -1.0), 0.0
            else: al, be, ga = (0.0, 0.0, 1.0) if th else (1.0, 0.0, 0.0)
            T = [rb16(al * Cc), rb16(be * Ss + ga * Cc), rb16(-al * Ss), rb16(be * Cc - ga * Ss)]
            Y[t] = (T[0] @ Dg[:, :, 0, 0] + T[1] @ Dg[:, :, 0, 1]
                    + (T[2] @ Dg[:, :, 1, 0] + T[3] @ Dg[:, :, 1, 1]) * tau[None, :])
    G = Fm / (1 + np.exp(-Fm))
    out = rb16(x64 + Y * G)
    return dict(mu=mu, r=r, Hp=Hp, F=Fm, D=Dm, Y=Y, out=out, xn=xn)

def h_image(Hp):
    img = np.zeros((32, 2, 28, 4, 64, 8), np.float32)
    l = np.arange(64); m = l & 31; h = l >> 5
    for rb in range(16):
        for wm in range(2):
            g = group_of(rb, wm)
            for th in range(2):
                t = t1_of(g, th) + 64 * m
                for U in range(28):
                    for f in range(4):
                        for sl in range(8):
                            n = 64 * U + 16 * f + 8 * (sl >> 2) + 4 * h + (sl & 3)
                            img[2 * rb + wm, th, U, f, :, sl] = Hp[t, n]
    return img

if __name__ == "__main__":
    rng = np.random.default_rng(0)
    x = rb16(rb16(rng.standard_normal((S, D))) * 0.05)
    w1 = rb16(rb16(rng.standard_normal((D, F))) * 0.05)
    w2 = rb16(rb16(rng.standard_normal((F, D))) * 0.05)
    m = emulate(x, w1, w2)
    Yx = np.fft.fft2(m['xn']).real
    print("Y rel err", np.linalg.norm(m['Y'] - Yx) / np.linalg.norm(Yx), "max", np.abs(m['Y'] - Yx).max())
    Fx = np.maximum(m['xn'] @ w1, 0) @ w2
    ox = x + Yx * Fx / (1 + np.exp(-Fx))
    print("out rel err", np.linalg.norm(m['out'] - ox) / np.linalg.norm(ox))
```

```python
import sys
import numpy as np
import model, hazard

KNAME = "recurrent_scan__spectral_fnet__dense_activation_relu__prompt_kernel"
XB, W1B, W2B, WSB = 1835008, 1605632, 1605632, 0x10000000
H_OFF = 0
D_OFF = 8 << 20
RS_OFF = 10 << 20
FH_OFF = RS_OFF + 0x10000
FD_OFF = RS_OFF + 0x20000
E_OFF = RS_OFF + 0x30000
ST_OFF = 12 << 20
SLOT = 32768
SPIN = 400000

class G:
    def __init__(self, stamps=False, opt=None):
        self.L = []
        self.stamps = stamps
        self.opt = opt or {}
        self.nst = 0
    def __call__(self, *lines):
        for s in lines:
            self.L.append(s)
    def stamp(self, k):
        if self.stamps:
            self(f"s_memtime s[{64+2*k}:{65+2*k}]")

X, W1, W2, WS, OUT, LA, LB = 8, 12, 16, 20, 24, 28, 32
sW, sRB, sCT, sHALF, sROT, sNONCE, sG = 36, 37, 38, 39, 40, 41, 42
def srd(b): return f"s[{b}:{b+3}]"
def vr(a, n): return f"v[{a}:{a+n-1}]"

def s_mirror(A, dst, val, sel, full, zero, tmp):
    A(f"s_sub_u32 s{tmp}, {full}, s{val}", f"s_cmp_eq_u32 s{val}, 0", f"s_cselect_b32 s{tmp}, {zero}, s{tmp}",
      f"s_cmp_eq_u32 s{sel}, 0", f"s_cselect_b32 s{dst}, s{val}, s{tmp}")

def spin(A, name, vdst, vaddr, soff, mask):
    A(f"s_mov_b32 exec_lo, {mask}", "s_mov_b32 exec_hi, 0", f"s_mov_b32 s60, {SPIN}",
      f"{name}:",
      f"buffer_load_dword v{vdst}, v{vaddr}, {srd(WS)}, s{soff} offen sc1",
      "s_waitcnt vmcnt(0)",
      f"v_cmp_ne_u32 vcc, s{sNONCE}, v{vdst}",
      f"s_cbranch_vccz {name}_ok",
      "s_sub_u32 s60, s60, 1", "s_cmp_lg_u32 s60, 0", f"s_cbranch_scc1 {name}",
      f"{name}_ok:", "s_mov_b64 exec, -1")

def dump_stamps(A, n):
    if not A.stamps: return
    A("s_memrealtime s[62:63]", "s_waitcnt lgkmcnt(0)",
      "s_lshl_b32 s60, s2, 3", f"s_add_u32 s60, s60, s{sW}", "s_lshl_b32 s60, s60, 7", f"s_add_u32 s60, s60, {ST_OFF}",
      "v_mov_b32 v2, 0", "s_mov_b64 exec, 1")
    for k, r in enumerate([100, 62] + [64 + 2 * j for j in range(n)]):
        A(f"v_mov_b32 v3, s{r}", f"buffer_store_dword v3, v2, {srd(WS)}, s60 offen offset:{4*k}", "s_nop 0")
    A("s_mov_b64 exec, -1")

def prologue(A):
    A("s_cmp_ge_u32 s2, 256", "s_cbranch_scc1 L_end")
    if A.stamps:
        A("s_memrealtime s[100:101]")
    A.stamp(0)
    A(f"s_load_dwordx2 s[{X}:{X+1}], s[0:1], 0",
      f"s_load_dwordx2 s[{W1}:{W1+1}], s[0:1], 48",
      f"s_load_dwordx2 s[{W2}:{W2+1}], s[0:1], 56",
      f"s_load_dwordx2 s[{OUT}:{OUT+1}], s[0:1], 64",
      f"s_load_dwordx2 s[{WS}:{WS+1}], s[0:1], 80")
    A("s_getpc_b64 s[4:5]", "L_pc:", "s_mov_b32 s6, L_end-L_pc", "s_mov_b32 s7, 0x20000",
      "v_lshlrev_b32 v1, 7, v0",
      "v_lshrrev_b32 v3, 6, v0",
      "buffer_load_dword v2, v1, s[4:7], 0 offen")
    A(f"v_readfirstlane_b32 s{sW}, v3")
    for b, n in ((X, XB), (W1, W1B), (W2, W2B), (WS, WSB), (OUT, XB)):
        A(f"s_mov_b32 s{b+2}, {n}", f"s_mov_b32 s{b+3}, 0x20000")
    A("v_and_b32 v0, 63, v0",
      "v_lshlrev_b32 v1, 4, v0",
      f"s_and_b32 s{sHALF}, s2, 1",
      "s_lshr_b32 s43, s2, 3",
      "s_and_b32 s44, s2, 6", "s_lshl_b32 s44, s44, 1",
      "s_cmp_lt_u32 s43, 4", "s_cbranch_scc1 L_dft")
    A("s_sub_u32 s43, s43, 4", "s_mul_i32 s45, s43, 37", "s_lshr_b32 s45, s45, 8",
      f"s_add_u32 s{sRB}, s44, s45",
      "s_mul_i32 s46, s45, 7", f"s_sub_u32 s{sCT}, s43, s46",
      "s_lshl_b32 s45, s45, 1", f"s_add_u32 s{sROT}, s{sCT}, s45",
      f"s_cmp_ge_u32 s{sROT}, 7", "s_cselect_b32 s45, 7, 0", f"s_sub_u32 s{sROT}, s{sROT}, s45")
    s_mirror(A, sG, sRB, sHALF, 32, 16, 45)
    A(f"s_cmp_ge_u32 s{sW}, 4", "s_cbranch_scc1 L_loader")

def load_nonce(A):
    A(f"s_lshl_b32 s61, s{sRB}, 2", f"s_add_u32 s61, s61, {E_OFF}",
      f"s_load_dword s{sNONCE}, s[{WS}:{WS+1}], s61")
def finish_nonce(A):
    A(f"s_mul_i32 s{sNONCE}, s{sNONCE}, 0x9E3779B1", f"s_add_u32 s{sNONCE}, s{sNONCE}, 0x7F4A7C15")

FB, ACC1, STG = 16, 64, 208
def p1_compute(A):
    vXb, vWb = [4, 5, 6, 7], [8, 9]
    A(f"s_lshr_b32 s47, s{sW}, 1", f"s_and_b32 s48, s{sW}, 1")
    A("v_and_b32 v10, 31, v0", "v_lshrrev_b32 v11, 5, v0",
      "v_bfe_u32 v12, v0, 1, 3", "v_xor_b32 v12, v12, v11",
      "v_lshlrev_b32 v12, 4, v12", "v_lshl_add_u32 v12, v10, 7, v12",
      "s_lshl_b32 s49, s47, 13", f"v_add_u32 v{vXb[0]}, s49, v12")
    for k in range(1, 4):
        A(f"v_xor_b32 v{vXb[k]}, {32*k}, v{vXb[0]}")
    A("v_bfe_u32 v12, v0, 2, 2",
      "v_lshl_add_u32 v13, v11, 3, v12", "v_lshlrev_b32 v13, 8, v13",
      "s_lshl_b32 s49, s48, 1", "v_xor_b32 v12, s49, v12", "v_lshl_add_u32 v13, v12, 6, v13",
      "v_bfe_u32 v12, v0, 4, 1", "v_lshl_add_u32 v13, v12, 5, v13",
      "v_and_b32 v12, 3, v0", "v_lshl_add_u32 v13, v12, 3, v13",
      f"v_add_u32 v{vWb[0]}, 16384, v13", f"v_xor_b32 v{vWb[1]}, 64, v{vWb[0]}")
    for i in range(64):
        A(f"v_mov_b32 v{ACC1+i}, 0")
    A("s_waitcnt lgkmcnt(0)")
    load_nonce(A)
    A("s_mul_i32 s49, s2, 6272", "v_lshlrev_b32 v12, 7, v0",
      f"s_cmp_eq_u32 s{sW}, 3", "s_cbranch_scc0 L_nopf",
      "s_mov_b32 exec_hi, 0x1ffff",
      f"buffer_load_dword v3, v12, {srd(W2)}, s49 offen",
      "s_mov_b64 exec, -1",
      "L_nopf:")
    A("s_mov_b32 s50, 0", "s_waitcnt lgkmcnt(0)")
    finish_nonce(A)
    def reads(ks, b):
        f = FB + 16 * b
        r = []
        for mt in range(2):
            r.append(f"ds_read_b128 {vr(f+4*mt,4)}, v{vXb[ks]} offset:{4096*mt}")
        for nt in range(2):
            for i in range(2):
                r.append(f"ds_read_b64_tr_b16 {vr(f+8+4*nt+2*i,2)}, v{vWb[nt]} offset:{ks*4096+i*1024}")
        return r
    def step(b, rd, pre=()):
        f = FB + 16 * b
        order = [rd[0], rd[2], rd[3], rd[1], rd[4], rd[5]]
        k = 0
        for nt in range(2):
            for mt in range(2):
                a = ACC1 + 16 * (2 * nt + mt)
                A(f"v_mfma_f32_32x32x16_bf16 {vr(a,16)}, {vr(f+8+4*nt,4)}, {vr(f+4*mt,4)}, {vr(a,16)}")
                if k == 0: A(*pre)
                if k < 3: A(*order[2*k:2*k+2])
                k += 1
    A.stamp(1)
    A("s_barrier")
    A.stamp(2)
    A(*reads(0, 0))
    A("L_p1loop:")
    A("s_waitcnt lgkmcnt(0)"); step(0, reads(1, 1))
    A("s_waitcnt lgkmcnt(0)"); step(1, reads(2, 0),
        pre=["s_add_u32 s50, s50, 1", "s_cmp_eq_u32 s50, 5", "s_cselect_b32 s51, -4, 1", "s_lshl_b32 s51, s51, 15"])
    A("s_waitcnt lgkmcnt(0)"); step(0, reads(3, 1))
    A("s_waitcnt lgkmcnt(0)", "s_barrier")
    step(1, reads(0, 0), pre=[f"v_add_u32 v{r}, s51, v{r}" for r in (vXb[0], vWb[0], vWb[1], vXb[1], vXb[2], vXb[3])])
    A("s_cmp_lt_u32 s50, 7", "s_cbranch_scc1 L_p1loop")
    A.stamp(3)
    A("s_lshl_b32 s49, s47, 8", "v_lshl_add_u32 v12, v10, 2, s49",
      "s_lshl_b32 s49, s48, 8", "v_lshl_add_u32 v13, v10, 2, s49")
    for mt in range(2):
        A(f"ds_read_b32 v{48+mt}, v12 offset:{128*mt}")
    for nt in range(2):
        for p in range(4):
            A(f"ds_read_b32 v{50+4*nt+p}, v13 offset:{512+512*p+128*nt}")
    f = FB + 16
    for r in (2, 3, 6, 7, 10, 11, 14, 15):
        A(f"v_mov_b32 v{f+r}, 0")
    A("s_mov_b32 s49, 0xffff0000", "s_waitcnt vmcnt(0) lgkmcnt(0)")
    for mt in range(2):
        d = f + 4 * mt
        A(f"v_mul_f32 v{48+mt}, {hex(np.float32(-1/896).view(np.uint32))}, v{48+mt}",
          f"v_cvt_pk_bf16_f32 v{d}, v{48+mt}, v{48+mt}", f"v_and_b32 v{d}, s49, v{d}",
          f"v_sub_f32 v{d}, v{48+mt}, v{d}", f"v_cvt_pk_bf16_f32 v{d}, v{48+mt}, v{d}", f"v_mov_b32 v{d+1}, v{d}")
    for nt in range(2):
        d = f + 8 + 4 * nt; c = 50 + 4 * nt
        A(f"v_add_f32 v{c}, v{c}, v{c+1}", f"v_add_f32 v{c+2}, v{c+2}, v{c+3}", f"v_add_f32 v{c}, v{c}, v{c+2}",
          f"v_cvt_pk_bf16_f32 v{d}, v{c}, v{c}", f"v_and_b32 v{d+1}, s49, v{d}",
          f"v_sub_f32 v{d+1}, v{c}, v{d+1}", f"v_cvt_pk_bf16_f32 v{d+1}, v{d+1}, v{d+1}")
    A(f"s_lshl_b32 s52, s{sRB}, 1", "s_add_u32 s52, s52, s47")
    for nt in range(2):
        for mt in range(2):
            a = ACC1 + 16 * (2 * nt + mt)
            A(f"v_mfma_f32_32x32x16_bf16 {vr(a,16)}, {vr(f+8+4*nt,4)}, {vr(f+4*mt,4)}, {vr(a,16)}")
    A(f"s_mul_i32 s53, s{sHALF}, 7", f"s_add_u32 s53, s53, s{sCT}", "s_lshl_b32 s53, s53, 1", "s_add_u32 s53, s53, s48",
      "s_mul_i32 s54, s52, 56", "s_add_u32 s54, s54, s53", "s_lshl_b32 s54, s54, 12",
      f"s_add_u32 s55, s54, {28*4096}", "s_nop 0")
    k = 0
    for nt in range(2):
        for mt in range(2):
            a = ACC1 + 16 * (2 * nt + mt)
            for jj in range(2):
                d = STG + 4 * k; k += 1
                for q in range(4):
                    A(f"v_cvt_pk_bf16_f32 v{d+q}, v{a+8*jj+2*q}, v{a+8*jj+2*q+1}")
                for q in range(4):
                    A(f"v_pk_max_i16 v{d+q}, v{d+q}, 0")
                A(f"buffer_store_dwordx4 {vr(d,4)}, v1, {srd(WS)}, s{54+mt} offen offset:{(2*nt+jj)*1024} sc1")
    A.stamp(4)
    A("s_barrier")
    w2_to_regs(A)
    A("s_waitcnt lgkmcnt(0)", "s_barrier")
    p2_setup(A)
    A("s_lshl_b32 s52, s52, 7", "s_lshl_b32 s53, s53, 2", "s_add_u32 s52, s52, s53", f"s_add_u32 s52, s52, {FH_OFF}",
      f"v_mov_b32 v53, s{sNONCE}", "v_mov_b32 v54, 0",
      "s_waitcnt vmcnt(0)")
    A.stamp(5)
    A("s_mov_b64 exec, 1",
      f"buffer_store_dword v53, v54, {srd(WS)}, s52 offen sc1",
      "s_mov_b64 exec, -1",
      "s_branch L_p2")

sM0, sA, sAi, sAc, sB, sBi, sBc, sKC = 47, 48, 49, 50, 51, 52, 53, 54
vA0, vA1, vB = 4, 5, 6
def dma_list(slot=None):
    out = []
    for i in range(8):
        first = i < 4
        off = (0 if first else 16384) + (i & 3) * 1024 + (slot * SLOT if slot is not None else 0)
        base = 55 if slot is None else sM0
        g = [f"s_add_u32 m0, s{base}, {off}"]
        if i & 3 == 0: g.append(f"s_mov_b32 s56, s{sA if first else sB}")
        else: g.append(f"s_add_u32 s56, s56, s{sAi if first else sBi}")
        v = (vA1 if i & 1 else vA0) if first else vB
        g.append(f"buffer_load_dwordx4 v{v}, {srd(LA if first else LB)}, s56 offen lds")
        out.append(g)
    return out
def dma_advance():
    return [f"s_add_u32 s{sKC}, s{sKC}, 1", f"s_cmp_eq_u32 s{sKC}, 7", "s_cselect_b32 s57, -6, 1",
            f"s_cselect_b32 s{sKC}, 0, s{sKC}",
            f"s_mul_i32 s58, s57, s{sAc}", f"s_add_u32 s{sA}, s{sA}, s58",
            f"s_mul_i32 s58, s57, s{sBc}", f"s_add_u32 s{sB}, s{sB}, s58"]
def dma_chunk(A, slot):
    for g in dma_list(slot): A(*g)
    A(*dma_advance())

def p1_loader(A):
    RB, CA, MA = 64, 96, 104
    A("L_loader:")
    A(f"s_sub_u32 s59, s{sW}, 4",
      "s_lshr_b32 s43, s59, 1", "s_and_b32 s44, s59, 1")
    s_mirror(A, 45, sRB, 43, 32, 16, 46)
    s_mirror(A, 45, 45, 44, 64, 32, 46)
    A(f"s_lshl_b32 s{sM0}, s59, 12",
      f"s_mul_i32 s{sA}, s45, 896", f"s_lshl_b32 s46, s{sROT}, 7", f"s_add_u32 s{sA}, s{sA}, s46",
      f"s_mov_b32 s{sAi}, {8*64*896}", f"s_mov_b32 s{sAc}, 128",
      f"s_lshl_b32 s46, s{sROT}, 2", "s_add_u32 s46, s46, s59", f"s_mul_i32 s{sB}, s46, {16*3584}",
      f"s_mul_i32 s46, s{sHALF}, 7", f"s_add_u32 s46, s46, s{sCT}", "s_lshl_b32 s46, s46, 8", f"s_add_u32 s{sB}, s{sB}, s46",
      f"s_mov_b32 s{sBi}, {4*3584}", f"s_mov_b32 s{sBc}, {64*3584}", f"s_mov_b32 s{sKC}, s{sROT}")
    A("v_lshrrev_b32 v10, 3, v0", "v_lshrrev_b32 v11, 4, v0",
      "v_mul_u32_u24 v12, 57344, v10", "v_xor_b32 v13, v11, v0", "v_and_b32 v13, 7, v13",
      f"v_lshl_add_u32 v{vA0}, v13, 4, v12", f"v_xor_b32 v{vA1}, 64, v{vA0}",
      "v_lshlrev_b32 v13, 2, v11", "v_xor_b32 v13, v13, v0", "v_and_b32 v13, 15, v13", "v_lshlrev_b32 v13, 4, v13",
      "v_mul_u32_u24 v12, 3584, v11", f"v_add_u32 v{vB}, v12, v13",
      "v_lshl_add_u32 v8, v11, 8, v13")
    A(f"s_mov_b32 s{LA+2}, {XB}", f"s_mov_b32 s{LA+3}, 0x20000", f"s_mov_b32 s{LB+2}, {W1B}", f"s_mov_b32 s{LB+3}, 0x20000")
    A("s_waitcnt lgkmcnt(0)")
    A(f"s_mov_b32 s{LA}, s{X}", f"s_mov_b32 s{LA+1}, s{X+1}", f"s_mov_b32 s{LB}, s{W1}", f"s_mov_b32 s{LB+1}, s{W1+1}")
    A.stamp(1)
    dma_chunk(A, 0)
    load_nonce(A)
    dma_chunk(A, 1)
    A(f"v_add_u32 v7, s{sM0}, v1", f"v_add_u32 v8, s{sM0}, v8")
    for i in range(12): A(f"v_mov_b32 v{CA+i}, 0")
    A("s_mov_b32 s43, 0", f"s_add_u32 s55, s{sM0}, {2*SLOT}", "s_mov_b32 s44, 0xffff0000", "s_waitcnt lgkmcnt(0)")
    finish_nonce(A)
    A("L_ldloop:")
    A("s_waitcnt vmcnt(8)", "s_barrier")
    for i in range(4): A(f"ds_read_b128 {vr(RB+4*i,4)}, v7 offset:{1024*i}")
    for i in range(4): A(f"ds_read_b128 {vr(RB+16+4*i,4)}, v8 offset:{16384+1024*i}")
    A("s_cmp_eq_u32 s43, 5", "s_cbranch_scc0 L_nosw")
    A(f"s_mov_b32 s{LA}, s{W2}", f"s_mov_b32 s{LA+1}, s{W2+1}", f"s_mov_b32 s{LA+2}, {W2B}",
      f"s_mov_b32 s{LB}, s{W2}", f"s_mov_b32 s{LB+1}, s{W2+1}",
      "s_mul_i32 s46, s59, 7", f"s_add_u32 s46, s46, s{sROT}", f"s_mul_i32 s{sA}, s46, {64*896}",
      f"s_lshl_b32 s46, s{sCT}, 7", f"s_add_u32 s{sA}, s{sA}, s46", f"s_add_u32 s{sB}, s{sA}, {32*896}",
      f"s_mov_b32 s{sAi}, {8*896}", f"s_mov_b32 s{sBi}, {8*896}", f"s_mov_b32 s{sAc}, {64*896}", f"s_mov_b32 s{sBc}, {64*896}",
      "v_lshlrev_b32 v13, 2, v11", "v_xor_b32 v13, v13, v0", "v_and_b32 v13, 7, v13", "v_lshlrev_b32 v13, 4, v13",
      "v_mul_u32_u24 v12, 896, v10", f"v_add_u32 v{vA0}, v12, v13", f"v_mov_b32 v{vA1}, v{vA0}", f"v_mov_b32 v{vB}, v{vA0}")
    A("L_nosw:")
    dl = dma_list()
    for i in range(8):
        A(*dl[i])
        A(f"s_waitcnt lgkmcnt({7-i})")
        for d in range(4):
            r = RB + 4 * i + d
            lo, hi = (MA + i, MA + i) if i < 4 else (CA + 2 * d, CA + 2 * d + 1)
            A(f"v_lshlrev_b32 v14, 16, v{r}", f"v_and_b32 v15, s44, v{r}",
              f"v_add_f32 v{lo}, v{lo}, v14", f"v_add_f32 v{hi}, v{hi}, v15")
    A(*dma_advance())
    A("s_add_u32 s43, s43, 1",
      "s_cmp_eq_u32 s43, 3", "s_cselect_b32 s46, -4, 1", "s_lshl_b32 s46, s46, 15", "s_add_u32 s55, s55, s46",
      "s_cmp_eq_u32 s43, 5", "s_cselect_b32 s46, -4, 1", "s_lshl_b32 s46, s46, 15",
      "v_add_u32 v7, s46, v7", "v_add_u32 v8, s46, v8",
      "s_cmp_lt_u32 s43, 7", "s_cbranch_scc1 L_ldloop")
    A.stamp(2)
    for j in range(4): A(f"v_permlane32_swap_b32 v{CA+j}, v{CA+j+4}")
    for md in ("quad_perm:[1,0,3,2]", "quad_perm:[2,3,0,1]", "row_half_mirror"):
        for i in range(4): A(f"v_add_f32_dpp v{MA+i}, v{MA+i}, v{MA+i} {md} row_mask:0xf bank_mask:0xf")
    for j in range(4): A(f"v_add_f32 v{CA+j}, v{CA+j}, v{CA+j+4}")
    A("s_lshl_b32 s46, s59, 7", "v_lshl_add_u32 v12, v10, 2, s46",
      "v_and_b32 v13, 15, v0", "v_lshlrev_b32 v13, 5, v13", "v_lshl_add_u32 v13, v11, 3, v13",
      "s_lshl_b32 s46, s59, 9", "v_add_u32 v13, s46, v13")
    for j in range(2): A(f"v_permlane16_swap_b32 v{CA+j}, v{CA+j+2}")
    A("s_mov_b32 exec_lo, 0x01010101", "s_mov_b32 exec_hi, 0x01010101")
    for i in range(4): A(f"ds_write_b32 v12, v{MA+i} offset:{32*i}")
    A("s_mov_b64 exec, -1")
    for j in range(2): A(f"v_add_f32 v{CA+j}, v{CA+j}, v{CA+j+2}")
    A(f"ds_write_b64 v13, {vr(CA,2)} offset:512")
    A("s_waitcnt lgkmcnt(0)", "s_barrier")
    A.stamp(3)
    dma_chunk(A, 4)
    dma_chunk(A, 1)
    A("s_waitcnt vmcnt(16)")
    A.stamp(4)
    A("s_barrier")
    w2_to_regs(A)
    dma_chunk(A, 0)
    A("s_waitcnt lgkmcnt(0)", "s_barrier")
    dma_chunk(A, 2)
    dma_chunk(A, 3)
    p2_setup(A)
    A.stamp(5)

WB, TF, XR, RSTD, W2R, ACC2, HR = 16, 32, 48, 52, 64, 128, 160
NRING = 12
vT0, vT1, vOUT = 2, 3, 9
def w2_reads(dst, f, base0, base1, slotoff):
    r = []
    for et in range(2):
        for i in range(2):
            off = slotoff + (f >> 1) * 16384 + (f & 1) * 2048 + i * 1024
            r.append(f"ds_read_b64_tr_b16 {vr(dst+4*et+2*i,2)}, v{base1 if et else base0} offset:{off}")
    return r

def w2_to_regs(A):
    A(f"s_and_b32 s60, s{sW}, 3", "s_lshl_b32 s60, s60, 12", f"s_add_u32 s60, s60, {2*SLOT}",
      "v_bfe_u32 v12, v0, 2, 2", "v_lshrrev_b32 v13, 5, v0", "v_lshl_add_u32 v13, v13, 2, v12",
      "v_lshl_add_u32 v13, v13, 7, s60",
      "v_lshrrev_b32 v12, 1, v12", "v_lshl_add_u32 v13, v12, 6, v13",
      "v_bfe_u32 v12, v0, 4, 1", "v_lshl_add_u32 v13, v12, 5, v13",
      "v_and_b32 v12, 3, v0", f"v_lshl_add_u32 v{vT0}, v12, 3, v13", f"v_xor_b32 v{vT1}, 64, v{vT0}")
    n = 0
    for c in range(2):
        for f in range(4):
            A(*w2_reads(W2R + 32 * c + 8 * f, f, vT0, vT1, c * SLOT))

def p2_setup(A):
    one, mone = "0x3f800000", "0xbf800000"
    A(f"s_bfe_u32 s43, s{sW}, 0x10001")
    s_mirror(A, 44, sG, 43, 64, 32, 45)
    A(f"s_and_b32 s45, s{sW}, 1", "s_lshl_b32 s45, s45, 10", "s_add_u32 s44, s44, s45",
      "v_and_b32 v12, 15, v0", "v_lshl_add_u32 v12, v12, 6, s44",
      "v_lshrrev_b32 v13, 4, v0",
      f"s_lshr_b32 s45, s{sW}, 2", f"s_lshl_b32 s46, s{sCT}, 1", "s_add_u32 s46, s46, s45",
      "s_lshl_b32 s45, s46, 6",
      f"v_mul_u32_u24 v{vOUT}, 896, v12", f"v_lshl_add_u32 v{vOUT}, v13, 4, v{vOUT}", f"v_add_u32 v{vOUT}, s45, v{vOUT}",
      f"buffer_load_dwordx4 {vr(XR,4)}, v{vOUT}, {srd(X)}, 0 offen",
      "v_and_b32 v14, 31, v12", "v_lshrrev_b32 v15, 5, v12", "v_lshl_add_u32 v14, v14, 6, v15", "v_lshlrev_b32 v8, 2, v14")
    A("s_cmp_eq_u32 s43, 0", f"s_cselect_b32 s57, {mone}, {one}", f"s_cselect_b32 s56, {one}, 0", f"s_cselect_b32 s58, 0, {one}",
      f"s_cmp_eq_u32 s{sG}, 0", f"s_cselect_b32 s56, s56, {one}", "s_cselect_b32 s57, 0, s57", "s_cselect_b32 s58, s58, 0",
      "s_cmp_ge_u32 s46, 7", "s_cselect_b32 s45, 0, 0x80000000",
      "s_xor_b32 s59, s56, s45", "s_xor_b32 s61, s58, s45", "s_xor_b32 s45, s45, 0x80000000", "s_xor_b32 s60, s57, s45")
    A("v_mul_u32_u24 v13, v13, v12", "v_lshlrev_b32 v13, 1, v13")
    for ks in range(4):
        for a in range(2):
            k = 8 * ks + a; d = TF + 4 * ks + 2 * a
            A(f"v_mad_u32_u24 v14, v12, {k}, v13", "v_and_b32 v14, 0x7ff, v14", "v_cvt_f32_u32 v14, v14",
              "v_mul_f32 v14, 0x3a000000, v14", "v_cos_f32 v15, v14", "v_sin_f32 v14, v14",
              "v_mul_f32 v56, s56, v15", "v_mul_f32 v57, s57, v14", "v_fma_f32 v57, s58, v15, v57",
              "v_mul_f32 v58, s59, v14", "v_mul_f32 v59, s60, v15", "v_fma_f32 v59, s61, v14, v59",
              f"v_cvt_pk_bf16_f32 v{d}, v56, v57", f"v_cvt_pk_bf16_f32 v{d+1}, v58, v59")

def phase2(A):
    A("L_p2:")
    A(f"s_and_b32 s43, s{sW}, 3", f"s_lshr_b32 s44, s{sW}, 2",
      f"s_lshl_b32 s45, s{sRB}, 1", f"s_add_u32 s45, s45, s{sHALF}",
      "s_mul_i32 s47, s43, 28", "s_lshl_b32 s48, s45, 7", "s_add_u32 s47, s47, s48", f"s_add_u32 s47, s47, {FH_OFF}",
      "v_lshlrev_b32 v4, 2, v0",
      "s_lshl_b32 s48, s45, 1", "s_add_u32 s48, s48, s44", "s_mul_i32 s48, s48, 28",
      "s_mul_i32 s49, s43, 7", "s_add_u32 s48, s48, s49", "s_lshl_b32 s48, s48, 12")
    order = [2, 3, 4, 5, 6, 0, 1]
    slots = {2: 4, 3: 1, 4: 0, 5: 2, 6: 3}
    for n, j in enumerate(order):
        A(f"s_add_u32 s49, s{sROT}, {j}", "s_cmp_ge_u32 s49, 7", "s_cselect_b32 s57, 7, 0", "s_sub_u32 s49, s49, s57",
          "s_lshl_b32 s49, s49, 12", f"s_add_u32 s{50+n}, s48, s49")
    A(f"v_add_u32 v{vT0}, {2*SLOT}, v{vT0}", f"v_add_u32 v{vT1}, {2*SLOT}, v{vT1}")
    A(f"s_lshl_b32 s57, s{sRB}, 7", f"s_add_u32 s57, s57, {FD_OFF}",
      f"s_sub_u32 s58, 6, s{sCT}", f"s_min_u32 s58, s58, s{sCT}",
      f"s_cmp_ge_u32 s{sCT}, 4", "s_cselect_b32 s59, 8, 0",
      "v_bfe_u32 v12, v0, 4, 1", "v_and_b32 v13, 15, v0", "v_xor_b32 v13, v13, v12", "v_lshlrev_b32 v13, 4, v13",
      "v_lshrrev_b32 v14, 4, v0", "v_lshlrev_b32 v14, 10, v14",
      "v_xor_b32 v12, 1, v12", "v_mad_u32_u24 v14, v12, s59, v14",
      "v_add_u32 v5, v13, v14", "v_xor_b32 v13, 128, v13", "v_add_u32 v6, v13, v14",
      "s_lshl_b32 s49, s58, 8",
      f"s_lshl_b32 s61, s{sG}, 3", f"s_add_u32 s61, s61, s{sW}", "s_lshl_b32 s61, s61, 13",
      "s_add_u32 s61, s61, s49", f"s_add_u32 s61, s61, {D_OFF}")
    spin(A, "L_hpoll", 53, 4, 47, "0x7f")
    A.stamp(6)
    q = []
    def hload(s):
        r = HR + 4 * (s % NRING)
        A(f"buffer_load_dwordx4 {vr(r,4)}, v1, {srd(WS)}, s{50 + s//4} offen offset:{(s&3)*1024} sc1")
        q.append(("h", s))
    def waitfor(tag):
        k = q.index(tag)
        n = len(q) - 1 - k
        del q[:k+1]
        return n
    for s in range(NRING): hload(s)
    A("s_barrier")
    A.stamp(7)
    cur_slot = 4
    def lds_reads(s):
        nonlocal cur_slot
        sl = slots[order[s // 4]]
        pre = []
        if sl not in (cur_slot, cur_slot + 1):
            nb = sl & ~1
            d = (nb - cur_slot) * SLOT
            pre = [f"v_add_u32 v{vT0}, {d & 0xffffffff}, v{vT0}", f"v_add_u32 v{vT1}, {d & 0xffffffff}, v{vT1}"]
            cur_slot = nb
        return pre + w2_reads(WB + 8 * (s & 1), s & 3, vT0, vT1, (sl - cur_slot) * SLOT)
    A(*lds_reads(0))
    POLL = A.opt.get("poll", 6)
    for s in range(28):
        if s < 20:
            A("s_waitcnt lgkmcnt(0)")
            a = WB + 8 * (s & 1)
        else:
            a = W2R + 8 * (s - 20)
        if s == 11: A("s_barrier")
        A(f"s_waitcnt vmcnt({waitfor(('h', s))})")
        h = HR + 4 * (s % NRING)
        for et in range(2):
            c = vr(ACC2 + 16 * et, 16)
            A(f"v_mfma_f32_32x32x16_bf16 {c}, {vr(a+4*et,4)}, {vr(h,4)}, {c if s else 0}")
            if et == 0 and s + 1 < 20: A(*lds_reads(s + 1))
        if s + NRING < 28: hload(s + NRING)
        if s == POLL:
            A(f"buffer_load_dword v53, v4, {srd(WS)}, s57 offen sc1"); q.append(("p", 0))
        if s == max(POLL + NRING, 28 - NRING - 1, 11):
            if ("p", 0) in q: A(f"s_waitcnt vmcnt({waitfor(('p', 0))})")
            A(f"v_cmp_ne_u32 vcc, s{sNONCE}, v53", "s_cmp_eq_u32 vcc_lo, 0", "s_cbranch_scc1 L_dready")
            spin(A, "L_dpoll", 53, 4, 57, "0xffffffff")
            A("L_dready:")
            A.stamp(8)
            A(f"s_lshl_b32 s49, s{sW}, 11", f"s_add_u32 m0, s49, {4*SLOT}", "s_add_u32 s47, s61, 4096",
              f"buffer_load_dwordx4 v5, {srd(WS)}, s61 offen sc1 lds",
              f"s_add_u32 m0, s49, {4*SLOT+1024}", f"s_mov_b32 s48, {RS_OFF}",
              f"buffer_load_dwordx4 v6, {srd(WS)}, s47 offen sc1 lds",
              f"buffer_load_dword v{RSTD}, v8, {srd(WS)}, s48 offen sc1")
            q.extend([("d", 0), ("d", 1), ("d", 2)])
    A.stamp(9)
    A("v_and_b32 v12, 31, v0", "v_lshrrev_b32 v13, 5, v0", "v_and_b32 v14, 15, v0", "v_xor_b32 v13, v13, v14",
      "v_lshlrev_b32 v13, 4, v13", "v_lshl_add_u32 v13, v12, 8, v13",
      "s_lshl_b32 s47, s43, 14", "s_lshl_b32 s48, s44, 13", "s_add_u32 s47, s47, s48", "v_add_u32 v16, s47, v13")
    for k in range(1, 8): A(f"v_xor_b32 v{16+k}, {32*k}, v16")
    for k in range(8):
        A(f"ds_write_b128 v{16+k}, {vr(ACC2+4*k,4)}")
    A("v_lshrrev_b32 v15, 4, v0", f"s_lshr_b32 s47, s{sW}, 2", "s_lshl_b32 s47, s47, 3",
      "v_lshl_add_u32 v10, v15, 1, s47", "v_xor_b32 v10, v10, v14", "v_lshlrev_b32 v10, 4, v10",
      "v_lshl_add_u32 v10, v14, 8, v10", "s_lshl_b32 s47, s43, 12", "v_add_u32 v10, s47, v10", "v_xor_b32 v11, 16, v10")
    A("s_lshl_b32 s47, s46, 5", "s_cmp_ge_u32 s46, 7", "s_cselect_b32 s48, -1, 1", "s_cselect_b32 s49, 448, 0",
      "s_lshl_b32 s58, s58, 5", "s_lshr_b32 s59, s59, 3",
      "v_lshrrev_b32 v24, 2, v14", "v_and_b32 v25, 3, v0", "v_lshl_add_u32 v24, v24, 3, v25", "v_add_u32 v24, s47, v24",
      "v_and_b32 v25, 1, v0", "v_xor_b32 v26, 1, v25", "v_mul_u32_u24 v26, s59, v26", "v_add_u32 v26, s58, v26",
      "v_and_b32 v27, 1, v15", "v_lshl_or_b32 v27, v27, 3, v25",
      "v_lshlrev_b32 v28, 10, v15", "v_lshl_add_u32 v28, v25, 8, v28", f"v_add_u32 v28, {4*SLOT}, v28")
    for n in range(2):
        A(f"v_add_u32 v29, {4*n}, v24", "v_mul_i32_i24 v29, s48, v29", "v_add_u32 v29, s49, v29",
          "v_lshrrev_b32 v29, 1, v29", "v_sub_u32 v29, v29, v26",
          "v_lshrrev_b32 v30, 1, v29", "v_xor_b32 v30, v30, v27", "v_lshl_add_u32 v30, v30, 4, v28",
          "v_and_b32 v29, 1, v29", f"v_lshl_add_u32 v{12+n}, v29, 3, v30")
    A("s_waitcnt vmcnt(0) lgkmcnt(0)", "s_barrier")
    A.stamp(10)
    DF, PR, YA = 64, 160, 96
    for ks in range(4):
        for n in range(2):
            for a in range(2):
                A(f"ds_read_b64 {vr(DF+8*ks+4*n+2*a,2)}, v{12+n} offset:{4096*ks+512*a}")
    A("s_waitcnt lgkmcnt(8)")
    def ym(ks):
        for n in range(2):
            c = vr(YA + 4 * n, 4)
            A(f"v_mfma_f32_16x16x32_bf16 {c}, {vr(DF+8*ks+4*n,4)}, {vr(TF+4*ks,4)}, {c if ks else 0}")
    ym(0); ym(1)
    for kq in range(4):
        for n in range(2):
            if kq * 2 + n < 7: A(f"ds_read_b128 {vr(PR+8*kq+4*n,4)}, v{10+n} offset:{16384*kq}")
    A("s_waitcnt lgkmcnt(7)")
    A(f"ds_read_b128 {vr(PR+28,4)}, v11 offset:{16384*3}")
    ym(2); ym(3)
    A(f"s_or_b32 s47, s{sHALF}, s{sCT}", f"s_or_b32 s47, s47, s{sW}", "s_cmp_eq_u32 s47, 0", "s_cbranch_scc0 L_noep",
      f"s_lshl_b32 s47, s{sRB}, 2", f"s_add_u32 s47, s47, {E_OFF}", f"v_mov_b32 v53, s{sNONCE}", "v_mov_b32 v54, 0",
      "s_mov_b64 exec, 1", f"buffer_store_dword v53, v54, {srd(WS)}, s47 offen", "s_mov_b64 exec, -1",
      "L_noep:")
    A(f"v_mul_f32 v55, 0xbfb8aa3b, v{RSTD}", "s_mov_b32 s47, 0xffff0000")
    for d in range(4):
        A(f"v_lshlrev_b32 v{16+2*d}, 16, v{XR+d}", f"v_and_b32 v{17+2*d}, s47, v{XR+d}")
    A("s_waitcnt lgkmcnt(4)")
    for i in range(8): A(f"v_add_f32 v{PR+i}, v{PR+i}, v{PR+8+i}")
    A("s_waitcnt lgkmcnt(0)")
    for i in range(8): A(f"v_add_f32 v{PR+16+i}, v{PR+16+i}, v{PR+24+i}")
    for i in range(8): A(f"v_add_f32 v{PR+i}, v{PR+i}, v{PR+16+i}")
    for i in range(8): A(f"v_mul_f32 v{PR+8+i}, v55, v{PR+i}")
    for i in range(8): A(f"v_exp_f32 v{PR+8+i}, v{PR+8+i}")
    for i in range(8): A(f"v_mul_f32 v{PR+i}, v{RSTD}, v{PR+i}")
    for i in range(8): A(f"v_add_f32 v{PR+8+i}, 1.0, v{PR+8+i}")
    for i in range(8): A(f"v_rcp_f32 v{PR+8+i}, v{PR+8+i}")
    for i in range(8): A(f"v_mul_f32 v{PR+i}, v{PR+i}, v{YA+i}")
    for i in range(8): A(f"v_fma_f32 v{16+i}, v{PR+i}, v{PR+8+i}, v{16+i}")
    for d in range(4): A(f"v_cvt_pk_bf16_f32 v{24+d}, v{16+2*d}, v{17+2*d}")
    A(f"buffer_store_dwordx4 {vr(24,4)}, v{vOUT}, {srd(OUT)}, 0 offen")
    A.stamp(11)
    dump_stamps(A, 12)
    A("s_endpgm")

def dft(A):
    LO, HI, TB, AC, AB = 16, 32, 128, 64, 16
    UST, VOFF, M1L, UB = 480, 30720, 0, 8192
    A("L_dft:")
    A(f"s_add_u32 s{sRB}, s44, s43")
    s_mirror(A, sG, sRB, sHALF, 32, 16, 45)
    A("s_getpc_b64 s[4:5]", "s_add_u32 s4, s4, dft_tables@rel32@lo+4", "s_addc_u32 s5, s5, dft_tables@rel32@hi+12",
      f"s_mov_b32 s6, {229376+8192}",
      f"s_lshl_b32 s43, s{sW}, 8", f"s_add_u32 s43, s43, s{sG}", "s_mul_i32 s43, s43, 896",
      "v_lshrrev_b32 v10, 3, v0", "v_and_b32 v11, 7, v0",
      "v_mul_u32_u24 v4, 28672, v10", "v_lshl_add_u32 v4, v11, 4, v4",
      "v_cmp_gt_u32 vcc, 4, v11", "v_mov_b32 v5, 0x40000000", f"s_mul_i32 s44, s{sW}, 28672",
      "v_cndmask_b32 v5, v5, v4, vcc", "s_mov_b64 s[46:47], vcc",
      "s_waitcnt lgkmcnt(0)")
    A.stamp(1)
    for i in range(4):
        v = 5 if i == 3 else 4
        A(f"buffer_load_dwordx4 {vr(LO+4*i,4)}, v{v}, {srd(X)}, s43 offen offset:{128*i}",
          f"buffer_load_dwordx4 {vr(HI+4*i,4)}, v{v}, {srd(X)}, s43 offen offset:{448+128*i}")
    A(f"s_lshl_b32 s45, s{sW}, 10", f"s_add_u32 m0, s45, {M1L}", f"s_add_u32 s45, s45, 229376",
      "buffer_load_dwordx4 v1, s[4:7], s45 offen lds")
    A("v_lshlrev_b32 v12, 2, v0", f"s_mov_b32 s45, {E_OFF}",
      f"buffer_load_dword v63, v12, {srd(WS)}, s45 offen")
    nt = [0]
    def tload():
        k = nt[0]; nt[0] += 1
        if k >= 28: return
        if k & 3 == 0 and k: A("s_add_u32 s44, s44, 4096")
        A(f"buffer_load_dwordx4 {vr(TB+4*k,4)}, v1, s[4:7], s44 offen offset:{(k&3)*1024}")
    for _ in range(4): tload()
    A("v_mov_b32 v13, 0x3f803f80")
    for i in range(4): A(f"v_mov_b32 v{48+i}, 0")
    for i in range(4):
        A(f"s_waitcnt vmcnt({nt[0] + 2 + 2*(3-i)})")
        for d in range(4):
            for src, acc in ((LO, 48), (HI, 50)):
                r = src + 4 * i + d
                A(f"v_dot2_f32_bf16 v{acc}, v{r}, v13, v{acc}", f"v_dot2_f32_bf16 v{acc+1}, v{r}, v{r}, v{acc+1}")
        tload()
    A.stamp(2)
    A(f"s_lshl_b32 s45, s{sW}, 3", "v_add_u32 v14, s45, v10", f"v_mul_u32_u24 v6, {UST}, v14", "v_lshl_add_u32 v6, v11, 4, v6",
      "v_add_f32 v48, v48, v50", "v_add_f32 v49, v49, v51", "v_lshlrev_b32 v14, 2, v14")
    for md in ("quad_perm:[1,0,3,2]", "quad_perm:[2,3,0,1]", "row_half_mirror"):
        A("s_nop 0")
        for i in range(2): A(f"v_add_f32_dpp v{48+i}, v{48+i}, v{48+i} {md} row_mask:0xf bank_mask:0xf")
    inv = hex(np.float32(1 / 448).view(np.uint32))
    A(f"v_mul_f32 v48, {inv}, v48", f"v_mul_f32 v49, {inv}, v49", "v_fma_f32 v49, -v48, v48, v49",
      "v_max_f32 v49, 0, v49", f"v_add_f32 v49, {hex(np.float32(1e-5).view(np.uint32))}, v49", "v_rsq_f32 v50, v49",
      f"s_lshl_b32 s45, s{sG}, 8", f"s_add_u32 s45, s45, {RS_OFF}",
      "v_mul_f32 v52, v48, v50", "v_mul_f32 v52, -2.0, v52", "s_mov_b32 s48, 0xffff0000",
      "s_mov_b32 exec_lo, 0x01010101", "s_mov_b32 exec_hi, 0x01010101",
      f"buffer_store_dword v50, v14, {srd(WS)}, s45 offen sc1",
      "s_mov_b64 exec, -1")
    for i in range(4):
        for d in range(4):
            a, b = LO + 4 * i + d, HI + 4 * i + d
            A(f"v_lshlrev_b32 v54, 16, v{a}", f"v_and_b32 v55, s48, v{a}", f"v_lshlrev_b32 v56, 16, v{b}", f"v_and_b32 v57, s48, v{b}",
              "v_pk_add_f32 v[58:59], v[54:55], v[56:57]",
              "v_pk_add_f32 v[60:61], v[54:55], v[56:57] neg_lo:[0,1] neg_hi:[0,1]",
              "v_pk_fma_f32 v[58:59], v[58:59], v[50:51], v[52:53] op_sel_hi:[1,0,0]",
              "v_pk_mul_f32 v[60:61], v[60:61], v[50:51] op_sel_hi:[1,0]",
              f"v_cvt_pk_bf16_f32 v{a}, v58, v59", f"v_cvt_pk_bf16_f32 v{b}, v60, v61")
            tload()
        if i == 3: A("s_mov_b64 exec, s[46:47]")
        A(f"ds_write_b128 v6, {vr(LO+4*i,4)} offset:{UB+128*i}", f"ds_write_b128 v6, {vr(HI+4*i,4)} offset:{UB+VOFF+128*i}")
        if i == 3: A("s_mov_b64 exec, -1")
        tload()
    assert nt[0] >= 28
    A("v_and_b32 v10, 15, v0", "v_lshrrev_b32 v11, 4, v0",
      f"v_mul_u32_u24 v6, {UST}, v10", "v_lshl_add_u32 v6, v11, 4, v6",
      f"s_lshr_b32 s45, s{sW}, 2", f"s_mul_i32 s43, s45, {VOFF}", "v_add_u32 v6, s43, v6",
      "s_waitcnt vmcnt(30) lgkmcnt(0)")
    A.stamp(3)
    A("s_barrier")
    def areads(ks):
        return [f"ds_read_b128 {vr(AB+16*(ks&1)+4*mt,4)}, v6 offset:{UB+mt*16*UST+64*ks}" for mt in range(4)]
    A(*areads(0))
    for ks in range(7):
        n = 28 - 4 * (ks + 1) + (1 if ks < 2 else 0)
        A(f"s_waitcnt vmcnt({n}) lgkmcnt(0)")
        rd = areads(ks + 1) if ks < 6 else []
        for mt in range(4):
            for n4 in range(4):
                c = vr(AC + 16 * mt + 4 * n4, 4)
                A(f"v_mfma_f32_16x16x32_bf16 {c}, {vr(AB+16*(ks&1)+4*mt,4)}, {vr(TB+16*ks+4*n4,4)}, {c if ks else 0}")
                if n4 == 0 and rd: A(rd[mt])
    A.stamp(4)
    M1R, OA, SR, VB = 128, 160, 192, 16
    for k in range(8): A(f"ds_read_b128 {vr(M1R+4*k,4)}, v1 offset:{M1L+1024*k}")
    A("v_lshlrev_b32 v4, 17, v11", "v_lshl_add_u32 v4, v10, 4, v4",
      f"s_lshl_b32 s43, s{sG}, 1", "s_add_u32 s43, s43, s45", "s_lshl_b32 s43, s43, 10",
      f"s_and_b32 s44, s{sW}, 3", "s_mul_i32 s48, s44, 224", "s_add_u32 s43, s43, s48", f"s_add_u32 s43, s43, {D_OFF}",
      "s_cmp_eq_u32 s44, 3", "s_cselect_b32 s46, -1, 0x3fff3fff", "s_mov_b32 s47, s46")
    for kk in range(2):
        for n4 in range(4):
            for hh in range(2):
                a = AC + 16 * (2 * kk + hh) + 4 * n4
                d = VB + 8 * n4 + 4 * kk + 2 * hh
                A(f"v_cvt_pk_bf16_f32 v{d}, v{a}, v{a+1}", f"v_cvt_pk_bf16_f32 v{d+1}, v{a+2}, v{a+3}")
    A("s_waitcnt lgkmcnt(0)", "s_nop 0")
    def s2m(rt):
        for kk in range(2):
            for n4 in range(4):
                c = vr(OA + 16 * (rt & 1) + 4 * n4, 4)
                A(f"v_mfma_f32_16x16x32_bf16 {c}, {vr(M1R+8*rt+4*kk,4)}, {vr(VB+8*n4+4*kk,4)}, {c if kk else 0}")
    def s2s(rt):
        for gg in range(2):
            d = SR + 8 * rt + 4 * gg
            for n4 in range(4):
                a = OA + 16 * (rt & 1) + 4 * n4 + 2 * gg
                A(f"v_cvt_pk_bf16_f32 v{d+n4}, v{a}, v{a+1}")
        A("s_mov_b64 exec, s[46:47]")
        for gg in range(2):
            A(f"s_add_u32 s48, s43, {(8*rt+gg)*65536}",
              f"buffer_store_dwordx4 {vr(SR+8*rt+4*gg,4)}, v4, {srd(WS)}, s48 offen sc1")
        A("s_mov_b64 exec, -1")
    s2m(0); s2m(1); s2s(0); s2m(2); s2s(1); s2m(3); s2s(2); s2s(3)
    A.stamp(5)
    A("s_mov_b32 s48, 0x9E3779B1", "v_mul_lo_u32 v63, v63, s48", "v_add_u32 v63, 0x7F4A7C15, v63",
      "v_lshlrev_b32 v12, 7, v0", f"s_lshl_b32 s48, s{sG}, 2", f"s_add_u32 s48, s48, {FD_OFF}",
      "s_waitcnt vmcnt(0)", "s_barrier")
    A.stamp(6)
    A(f"s_cmp_eq_u32 s{sW}, 0", "s_cbranch_scc0 L_dfin",
      "s_mov_b64 exec, 0xffff",
      f"buffer_store_dword v63, v12, {srd(WS)}, s48 offen sc1",
      "s_mov_b64 exec, -1",
      "L_dfin:")
    dump_stamps(A, 7)

def tables():
    t = np.concatenate([model.cs_table().ravel(), model.m1_table().ravel()]).view(np.uint64)
    out = []
    for i in range(0, len(t), 8):
        out.append(".quad " + ",".join(hex(int(v)) for v in t[i:i+8]))
    return out

def build(stamps=False, opt=None):
    A = G(stamps, opt)
    prologue(A)
    p1_compute(A)
    p1_loader(A)
    phase2(A)
    dft(A)
    A("L_end:", "s_endpgm")
    bad = hazard.check(A.L)
    for x in bad:
        print("HAZARD need %d have %d\n   %d: %s\n   %d: %s" % (x[4], x[5], x[0], x[1], x[2], x[3]), file=sys.stderr)
    head = open("recurrent_scan__spectral_fnet__dense_activation_relu__prompt.s.ref").read().split("; Override")[0]
    txt = head + "; @launch grid=(256,1,1) block=(512,1,1) lds=163840\n"
    txt += f'.amdgcn_target "amdgcn-amd-amdhsa--gfx950"\n.text\n.globl {KNAME}\n.p2align 8\n.type {KNAME},@function\n{KNAME}:\n'
    txt += "\n".join(("" if l.endswith(":") else "  ") + l for l in A.L) + "\n"
    txt += f""".section .rodata,"a"
.p2align 6
.amdhsa_kernel {KNAME}
  .amdhsa_next_free_vgpr 256
  .amdhsa_next_free_sgpr 102
  .amdhsa_accum_offset 256
  .amdhsa_group_segment_fixed_size 0
  .amdhsa_kernarg_size 88
  .amdhsa_user_sgpr_count 2
  .amdhsa_user_sgpr_kernarg_segment_ptr 1
  .amdhsa_system_sgpr_workgroup_id_x 1
.end_amdhsa_kernel
.p2align 10
dft_tables:
"""
    txt += "\n".join(tables()) + "\n"
    return txt, len(bad)

if __name__ == "__main__":
    import argparse
    ap = argparse.ArgumentParser()
    ap.add_argument("-o", default="k.s")
    ap.add_argument("--stamps", action="store_true")
    ap.add_argument("--opt", default="{}")
    a = ap.parse_args()
    t, nb = build(a.stamps, eval(a.opt))
    open(a.o, "w").write(t)
    print("wrote", a.o, len(t), "bytes;", nb, "hazards")
```
